```python
import torch

def _softmax(x, axis=-1):
    return torch.softmax(x, dim=axis)
def _gelu(x):
    return torch.nn.functional.gelu(x, approximate="tanh")
def _silu(x):
    return torch.nn.functional.silu(x)
def _sigmoid(x):
    return torch.sigmoid(x)
def _layernorm(x, axis=-1, eps=1e-5):
    m = x.mean(dim=axis, keepdim=True)
    v = x.var(dim=axis, keepdim=True, unbiased=False)
    return (x - m) / torch.sqrt(v + eps)
def _scatter_add(tgt, idx, src, axis=0):
    return tgt.clone().index_add_(axis, idx, src)
def _segment_sum(src, seg, n):
    out = torch.zeros((n,) + src.shape[1:], dtype=src.dtype)
    return out.index_add_(0, seg, src)
def _pad(x, pw):
    flat = tuple(v for pair in reversed(pw) for v in pair)
    return torch.nn.functional.pad(x, flat)

kernel_name = 'standalone__gqa_softmax__near_ridge'

def setup_inputs():

    _w = (lambda a: (lambda t: t.to(torch.bfloat16) if t.is_floating_point() else t)(torch.as_tensor(a)))
    B, Hq, Hkv, Sq, Sk, D = 8, 32, 4, 80, 1024, 128
    return {
        "q": _w((lambda *s: torch.randn(*s, dtype=torch.bfloat16) * 0.8)(B, Hq, Sq, D)),
        "k": _w((lambda *s: torch.randn(*s, dtype=torch.bfloat16) * 0.8)(B, Hkv, Sk, D)),
        "v": _w((lambda *s: torch.randn(*s, dtype=torch.bfloat16) * 0.05)(B, Hkv, Sk, D)),
    }

def reference(q, k, v):
    B, Hq, Sq, D = q.shape
    Hkv = k.shape[1]
    rep = Hq // Hkv
    k = (lambda x, n, axis: torch.repeat_interleave(x, n, dim=axis))(k, rep, axis=1)
    v = (lambda x, n, axis: torch.repeat_interleave(x, n, dim=axis))(v, rep, axis=1)
    scale = D ** -0.5
    scores = torch.einsum("bhqd,bhkd->bhqk", q, k) * scale
    p = _softmax(scores, axis=-1)
    return torch.einsum("bhqk,bhkd->bhqd", p, v)
```

```python
import sys
def gen(body, reps=8, iters=50, nwaves=4, grid=256, vgprs=512):
    L = []
    A = L.append
    A(f"; @launch grid=({grid},1,1) block=({nwaves*64},1,1) lds=65536")
    A('.amdgcn_target "amdgcn-amd-amdhsa--gfx950"')
    A(".text\n.globl mb_kernel\n.p2align 8\n.type mb_kernel,@function\nmb_kernel:")
    A("s_load_dwordx4 s[4:7], s[0:1], 8")
    A("s_load_dwordx2 s[8:9], s[0:1], 40")
    A("v_lshrrev_b32 v1, 6, v0")
    A("v_and_b32 v2, 63, v0")
    A("s_nop 0")
    A("v_readfirstlane_b32 s30, v1")
    A("v_lshlrev_b32 v3, 4, v2")
    A("v_lshlrev_b32 v6, 3, v2")
    A("s_lshl_b32 s35, s30, 13")
    A("v_add_u32 v4, s35, v3")
    A("v_add_u32 v5, s35, v6")
    A("s_waitcnt lgkmcnt(0)")
    A("s_mov_b32 s12, s4\ns_mov_b32 s13, s5\ns_mov_b32 s14, 0x800000\ns_mov_b32 s15, 0x20000")
    A("s_mov_b32 m0, s35")
    A("s_lshl_b32 s37, s2, 14")
    for r in range(8, 256, 4):
        A(f"buffer_load_dwordx4 v[{r}:{r+3}], v3, s[12:15], s37 offen offset:{(r*16)%4096}")
        if r % 64 == 60: A("s_waitcnt vmcnt(0)")
    A("s_waitcnt vmcnt(0)")
    for r in range(8, 40, 4):
        A(f"ds_write_b128 v4, v[{r}:{r+3}] offset:{(r-8)*256}")
    if vgprs > 256:
        for r in range(0, 256):
            A(f"v_accvgpr_write_b32 a{r}, 0")
    for r in range(128, 256):
        A(f"v_mov_b32 v{r}, 0")
    A("s_waitcnt lgkmcnt(0)")
    A("s_barrier")
    A("s_mov_b32 s36, 0")
    A("s_memtime s[24:25]")
    A("s_memrealtime s[22:23]")
    A("s_waitcnt lgkmcnt(0)")
    A(".p2align 6")
    A("L_loop:")
    for r in range(reps):
        for ins in body:
            A(ins)
    A("s_add_u32 s36, s36, 1")
    A(f"s_cmp_lt_u32 s36, {iters}")
    A("s_cbranch_scc1 L_loop")
    A("s_waitcnt vmcnt(0) lgkmcnt(0)")
    A("s_memtime s[28:29]")
    A("s_memrealtime s[38:39]")
    A("s_waitcnt lgkmcnt(0)")
    A(f"s_mul_i32 s40, s2, {nwaves}")
    A("s_add_u32 s40, s40, s30")
    A("s_lshl_b32 s40, s40, 6")
    A("s_mov_b32 s44, s8\ns_mov_b32 s45, s9\ns_mov_b32 s46, 0x1000000\ns_mov_b32 s47, 0x20000")
    for i, s in enumerate([24,28,22,38]):
        A(f"v_mov_b32 v4, s{s}")
        A(f"v_mov_b32 v5, {i*4}")
        A(f"buffer_store_dword v4, v5, s[44:47], s40 offen")
    A("s_endpgm")
    A('.section .rodata,"a"\n.p2align 6\n.amdhsa_kernel mb_kernel')
    A(f"  .amdhsa_next_free_vgpr {vgprs}\n  .amdhsa_next_free_sgpr 102\n  .amdhsa_accum_offset 256\n  .amdhsa_group_segment_fixed_size 0\n  .amdhsa_kernarg_size 48\n  .amdhsa_user_sgpr_count 2\n  .amdhsa_user_sgpr_kernarg_segment_ptr 1\n  .amdhsa_system_sgpr_workgroup_id_x 1\n.end_amdhsa_kernel")
    A(f"; nbody={reps*iters}")
    return "\n".join(L) + "\n"

M32 = lambda d: f"v_mfma_f32_32x32x16_bf16 v[{d}:{d+15}], v[8:11], v[12:15], v[{d}:{d+15}]"
M32a = lambda d: f"v_mfma_f32_32x32x16_bf16 a[{d}:{d+15}], v[8:11], v[12:15], a[{d}:{d+15}]"
M16 = lambda d: f"v_mfma_f32_16x16x32_bf16 v[{d}:{d+3}], v[8:11], v[12:15], v[{d}:{d+3}]"
M16a = lambda d: f"v_mfma_f32_16x16x32_bf16 a[{d}:{d+3}], v[8:11], v[12:15], a[{d}:{d+3}]"
EXP = lambda i: f"v_exp_f32 v{64+i}, v{40+i}"
ADD = lambda i: f"v_add_f32 v{96+i}, v{96+i}, v{40+i}"
PKADD = lambda i: f"v_pk_add_f32 v[{96+2*i}:{97+2*i}], v[{96+2*i}:{97+2*i}], v[{40+2*i}:{41+2*i}]"
CVT = lambda i: f"v_cvt_pk_bf16_f32 v{112+i}, v{40+i}, v{41+i}"
DOT2 = lambda i: f"v_dot2_f32_bf16 v{96+i}, v{40+i}, v16, v{96+i}"
DOT2C = lambda i: f"v_dot2c_f32_bf16 v{96+i}, v{40+i}, v16"
RD128 = lambda i: f"ds_read_b128 v[{16+4*i}:{19+4*i}], v4 offset:{1024*i}"
RDTR = lambda i: f"ds_read_b64_tr_b16 v[{32+2*i}:{33+2*i}], v5 offset:{512*i}"
DMA = lambda i: f"buffer_load_dwordx4 v3, s[12:15], s37 offen offset:{1024*i} lds"
SAL = "s_add_u32 s50, s50, 1"
cfg = {
 "i_m32": [M32(128)],
 "i_m16": [M16(128)],
 "i_exp": [EXP(0), EXP(1), EXP(2), EXP(3)],
 "i_add": [ADD(0), ADD(1), ADD(2), ADD(3)],
 "i_pkadd": [PKADD(0), PKADD(1), PKADD(2), PKADD(3)],
 "i_cvt": [CVT(0), CVT(1), CVT(2), CVT(3)],
 "i_dot2": [DOT2(0), DOT2(1), DOT2(2), DOT2(3)],
 "i_dot2c": [DOT2C(0), DOT2C(1), DOT2C(2), DOT2C(3)],
 "i_sal": [SAL, SAL, SAL, SAL],
 "i_m16_exp": [M16(128), EXP(0)],
 "i_m16_2add": [M16(128), ADD(0), ADD(1)],
 "i_m16_exp_add": [M16(128), EXP(0), ADD(1)],
 "i_m16_3add": [M16(128), ADD(0), ADD(1), ADD(2)],
 "i_m16_exp_sal": [M16(128), EXP(0), SAL],
 "i_m16_exp_rd": [M16(128), EXP(0), RD128(0)],
 "i_m32_3exp": [M32(128), EXP(0), EXP(1), EXP(2)],
 "i_m32_2exp2add": [M32(128), EXP(0), ADD(0), EXP(1), ADD(1)],
 "i_m32_2exp2add1cvt": [M32(128), EXP(0), ADD(0), EXP(1), ADD(1), CVT(0)],
 "i_m32_2exp1pk1cvt": [M32(128), EXP(0), EXP(1), PKADD(0), CVT(0)],
 "i_m32_2exp1dot1cvt": [M32(128), EXP(0), EXP(1), DOT2C(0), CVT(0)],
 "i_m32_2exp1cvt1rd": [M32(128), EXP(0), EXP(1), CVT(0), RD128(0)],
 "i_m32_2exp2add1rd": [M32(128), EXP(0), ADD(0), EXP(1), ADD(1), RD128(0)],
 "i_m32_2exp2add1sal": [M32(128), EXP(0), ADD(0), EXP(1), ADD(1), SAL],
 "i_m32_6add": [M32(128)] + [ADD(i) for i in range(6)],
 "i_m32_7add": [M32(128)] + [ADD(i) for i in range(7)],
 "i_m32_6add_rd": [M32(128)] + [ADD(i) for i in range(6)] + [RD128(0)],
 "i_m32_6add_sal": [M32(128)] + [ADD(i) for i in range(6)] + [SAL],
 "i_m32_4pk": [M32(128)] + [PKADD(i) for i in range(4)],
 "i_m32a_6add": [M32a(128)] + [ADD(i) for i in range(6)],
 "i_m32x4_dma": [M32(128), ADD(0), ADD(1), ADD(2), ADD(3), M32(144), ADD(0), ADD(1), ADD(2), ADD(3), M32(160), ADD(0), ADD(1), ADD(2), ADD(3), DMA(0), "s_waitcnt vmcnt(8)"],
 "i_m32x3_nodma": [M32(128), ADD(0), ADD(1), ADD(2), ADD(3), M32(144), ADD(0), ADD(1), ADD(2), ADD(3), M32(160), ADD(0), ADD(1), ADD(2), ADD(3)],
 "i_m32x3_6add_dma": [M32(128)] + [ADD(i) for i in range(6)] + [M32(144)] + [ADD(i) for i in range(6)] + [M32(160)] + [ADD(i) for i in range(5)] + [DMA(0)],
}
if __name__ == "__main__":
    names = []
    for name, body in cfg.items():
        open(name + ".s", "w").write(gen(body)); names.append(name + ".s")
        if name in ("i_exp", "i_add", "i_pkadd", "i_cvt", "i_m16_exp_add", "i_m16_3add", "i_m32_2exp2add1cvt", "i_m32_7add", "i_m16_exp_rd"):
            open(name + "_w8.s", "w").write(gen(body, nwaves=8, vgprs=256)); names.append(name + "_w8.s")
    print(" ".join(names))
```

```python
from gen_issue import *
names = []
def emit(name, body, **kw):
    open(name + ".s", "w").write(gen(body, **kw)); names.append(name + ".s")
ADDS = lambda n: [f"v_add_f32 v{96+i}, v{96+i}, v{40+i}" for i in range(n)]
for g in (256, 8):
    for vg in (512, 256, 128):
        if vg == 128: continue
        emit(f"j_add4_g{g}_v{vg}", ADDS(4), grid=g, vgprs=vg)
        emit(f"j_add16_g{g}_v{vg}", ADDS(16), grid=g, vgprs=vg, reps=2)
        emit(f"j_add16_g{g}_v{vg}_long", ADDS(16), grid=g, vgprs=vg, reps=8, iters=500)
    emit(f"j_add16_g{g}_w1", ADDS(16), grid=g, nwaves=1, reps=2)
    emit(f"j_add16_g{g}_w2", ADDS(16), grid=g, nwaves=2, reps=2)
    emit(f"j_m32_g{g}", [M32(128)], grid=g, reps=32, iters=12)
    emit(f"j_m16_g{g}", [M16(128)], grid=g, reps=64, iters=12)
    emit(f"j_m32_g{g}_long", [M32(128)], grid=g, reps=32, iters=400)
    emit(f"j_m16_g{g}_long", [M16(128)], grid=g, reps=64, iters=400)
    emit(f"j_m32_4add_g{g}", [M32(128)] + ADDS(4), grid=g, reps=32, iters=12)
    emit(f"j_m32_5add_g{g}", [M32(128)] + ADDS(5), grid=g, reps=32, iters=12)
    emit(f"j_m32_6add_g{g}", [M32(128)] + ADDS(6), grid=g, reps=32, iters=12)
    emit(f"j_m16_1add_g{g}", [M16(128)] + ADDS(1), grid=g, reps=64, iters=12)
    emit(f"j_m16_2add_g{g}", [M16(128)] + ADDS(2), grid=g, reps=64, iters=12)
    emit(f"j_m16x2_2add_g{g}", [M16(128)] + ADDS(2) + [M16(132)] + ADDS(2), grid=g, reps=32, iters=12)
print(" ".join(names))
```
